```python
import torch

def _softmax(x, axis=-1):
    return torch.softmax(x, dim=axis)
def _gelu(x):
    return torch.nn.functional.gelu(x, approximate="tanh")
def _silu(x):
    return torch.nn.functional.silu(x)
def _sigmoid(x):
    return torch.sigmoid(x)
def _layernorm(x, axis=-1, eps=1e-5):
    m = x.mean(dim=axis, keepdim=True)
    v = x.var(dim=axis, keepdim=True, unbiased=False)
    return (x - m) / torch.sqrt(v + eps)
def _scatter_add(tgt, idx, src, axis=0):
    return tgt.clone().index_add_(axis, idx, src)
def _segment_sum(src, seg, n):
    out = torch.zeros((n,) + src.shape[1:], dtype=src.dtype)
    return out.index_add_(0, seg, src)
def _pad(x, pw):
    flat = tuple(v for pair in reversed(pw) for v in pair)
    return torch.nn.functional.pad(x, flat)

kernel_name = 'concat_heads__mha_block_cached__gqa_block_cached__near_ridge'

def setup_inputs():

    _w = (lambda a: (lambda t: t.to(torch.bfloat16) if t.is_floating_point() else t)(torch.as_tensor(a)))
    def _A_setup():
        B, Sq, D = 16, 96, 640
        H, Sk, Dh = 32, 512, 192
        return {
            "x": _w((lambda *s: torch.randn(*s, dtype=torch.bfloat16) * 0.8)(B, Sq, D)),
            "k_cache": _w((lambda *s: torch.randn(*s, dtype=torch.bfloat16) * 0.8)(B, H, Sk, Dh)),
            "v_cache": _w((lambda *s: torch.randn(*s, dtype=torch.bfloat16) * 0.05)(B, H, Sk, Dh)),
            "wq": _w((lambda *s: torch.randn(*s, dtype=torch.bfloat16) * 0.8)(D, H * Dh) * (D ** -0.5)),
            "wo": _w((lambda *s: torch.randn(*s, dtype=torch.bfloat16) * 0.05)(H * Dh, D) * ((H * Dh) ** -0.5)),
        }
    _A_in = _A_setup()

    def _B_setup():
        B, Sq, D = 16, 96, 640
        Hq, Hkv, Sk, Dh = 32, 32, 512, 192
        assert Hq % Hkv == 0, (Hq, Hkv)
        return {
            "x": _w((lambda *s: torch.randn(*s, dtype=torch.bfloat16) * 0.8)(B, Sq, D)),
            "k_cache": _w((lambda *s: torch.randn(*s, dtype=torch.bfloat16) * 0.8)(B, Hkv, Sk, Dh)),
            "v_cache": _w((lambda *s: torch.randn(*s, dtype=torch.bfloat16) * 0.05)(B, Hkv, Sk, Dh)),
            "wq": _w((lambda *s: torch.randn(*s, dtype=torch.bfloat16) * 0.8)(D, Hq * Dh) * (D ** -0.5)),
            "wo": _w((lambda *s: torch.randn(*s, dtype=torch.bfloat16) * 0.05)(Hq * Dh, D) * ((Hq * Dh) ** -0.5)),
        }
    _B_in = _B_setup()

    return {
        "A_x": _A_in["x"],
        "A_k_cache": _A_in["k_cache"],
        "A_v_cache": _A_in["v_cache"],
        "A_wq": _A_in["wq"],
        "A_wo": _A_in["wo"],
        "B_x": _B_in["x"],
        "B_k_cache": _B_in["k_cache"],
        "B_v_cache": _B_in["v_cache"],
        "B_wq": _B_in["wq"],
        "B_wo": _B_in["wo"],
    }

def reference(A_x, A_k_cache, A_v_cache, A_wq, A_wo, B_x, B_k_cache, B_v_cache, B_wq, B_wo):
    def _A_ref(x, k_cache, v_cache, wq, wo):
        B, Sq, D = x.shape
        H, Dh = 32, 192
        q = (lambda x, *d: x.permute(*d))((x @ wq).reshape(B, Sq, H, Dh), 0, 2, 1, 3)
        scores = torch.einsum("bhqd,bhkd->bhqk", q, k_cache) * (Dh ** -0.5)
        p = _softmax(scores, axis=-1)
        o = torch.einsum("bhqk,bhkd->bhqd", p, v_cache)
        return (lambda x, *d: x.permute(*d))(o, 0, 2, 1, 3).reshape(B, Sq, H * Dh) @ wo

    def _B_ref(x, k_cache, v_cache, wq, wo):
        B, Sq, D = x.shape
        Hq, Dh = 32, 192
        Hkv = k_cache.shape[1]
        rep = Hq // Hkv
        q = (lambda x, *d: x.permute(*d))((x @ wq).reshape(B, Sq, Hq, Dh), 0, 2, 1, 3)
        k = (lambda x, n, axis: torch.repeat_interleave(x, n, dim=axis))(k_cache, rep, axis=1)
        v = (lambda x, n, axis: torch.repeat_interleave(x, n, dim=axis))(v_cache, rep, axis=1)
        scores = torch.einsum("bhqd,bhkd->bhqk", q, k) * (Dh ** -0.5)
        p = _softmax(scores, axis=-1)
        o = torch.einsum("bhqk,bhkd->bhqd", p, v)
        return (lambda x, *d: x.permute(*d))(o, 0, 2, 1, 3).reshape(B, Sq, Hq * Dh) @ wo

    a = _A_ref(A_x, A_k_cache, A_v_cache, A_wq, A_wo)
    b = _B_ref(B_x, B_k_cache, B_v_cache, B_wq, B_wo)
    return torch.concatenate([a, b], axis=-1)
```

```python
import re

class Asm:
    def __init__(self):
        self.lines = []
    def __call__(self, s):
        for l in s.split("\n"):
            l = l.strip()
            if l: self.lines.append(l)
    def label(self, n): self.lines.append(n + ":")
    def c(self, s): self.lines.append("; " + s)
    def nop(self, n):
        while n > 0:
            k = min(n, 16)
            self.lines.append(f"s_nop {k-1}")
            n -= k
    def text(self): return "\n".join(self.lines) + "\n"

def v(a, n=1):
    return f"v{a}" if n == 1 else f"v[{a}:{a+n-1}]"
def s(a, n=1):
    return f"s{a}" if n == 1 else f"s[{a}:{a+n-1}]"

_reg = re.compile(r"(?<![\w.])([vsa])(?:(\d+)|\[(\d+):(\d+)\])(?![\w])")
def regs(op):
    out = set()
    for m in _reg.finditer(op):
        k = m.group(1)
        if m.group(2) is not None: out.add((k, int(m.group(2))))
        else:
            for i in range(int(m.group(3)), int(m.group(4)) + 1): out.add((k, i))
    if re.search(r"\bvcc\b", op): out.add(("s", "vcc"))
    if re.search(r"\bm0\b", op): out.add(("s", "m0"))
    if re.search(r"\bexec\b", op): out.add(("s", "exec"))
    return out

TRANS = ("v_exp_f32", "v_log_f32", "v_rcp_f32", "v_rsq_f32", "v_sqrt_f32", "v_sin_f32", "v_cos_f32")

def parse(line):
    line = line.split(";")[0].strip()
    if not line or line.endswith(":") or line.startswith("."): return None
    parts = line.split(None, 1)
    op = parts[0]
    ops = [x.strip() for x in parts[1].split(",")] if len(parts) > 1 else []
    d = dict(op=op, ops=ops, line=line, w=set(), r=set(), kind="other")
    if op.startswith("v_mfma"):
        d["kind"] = "mfma"
        d["w"] = regs(ops[0]); d["a"] = regs(ops[1]); d["b"] = regs(ops[2]); d["cin"] = regs(ops[3])
        d["r"] = d["a"] | d["b"] | d["cin"]
        d["passes"] = 8 if "32x32" in op else 4
    elif op.startswith("v_cmp"):
        d["kind"] = "valu"; d["w"] = regs(ops[0]); d["r"] = set().union(*[regs(x) for x in ops[1:]])
    elif op.startswith("v_readfirstlane") or op.startswith("v_readlane"):
        d["kind"] = "valu"; d["lane"] = True; d["w"] = regs(ops[0]); d["r"] = set().union(*[regs(x) for x in ops[1:]])
    elif op.startswith("v_permlane"):
        d["kind"] = "valu"; d["perm"] = True; d["w"] = regs(ops[0]) | regs(ops[1]); d["r"] = set(d["w"])
    elif op.startswith("v_"):
        d["kind"] = "valu"; d["w"] = regs(ops[0]); d["r"] = set().union(*[regs(x) for x in ops[1:]]) if len(ops) > 1 else set()
        if op.startswith("v_fmac") or op.startswith("v_pk_fmac"): d["r"] |= d["w"]
        if "_co_" in op: d["w"] |= regs(ops[1])
        if op.startswith("v_cndmask") and len(ops) == 3: d["r"].add(("s", "vcc"))
        d["trans"] = op.replace("_e32", "").replace("_e64", "") in TRANS
    elif op.startswith("ds_read") or op.startswith("ds_bpermute"):
        d["kind"] = "ds"; d["w"] = regs(ops[0]); d["r"] = set().union(*[regs(x) for x in ops[1:]])
    elif op.startswith("ds_"):
        d["kind"] = "ds"; d["r"] = set().union(*[regs(x) for x in ops])
    elif op.startswith("buffer_load") or op.startswith("global_load"):
        d["kind"] = "vmem"
        if " lds" in line or "_lds_" in op:
            d["r"] = set().union(*[regs(x) for x in ops]) | {("s", "m0")}; d["ldsdma"] = True
        else:
            d["w"] = regs(ops[0]); d["r"] = set().union(*[regs(x) for x in ops[1:]])
    elif op.startswith("buffer_store") or op.startswith("global_store") or op.startswith("buffer_atomic") or op.startswith("global_atomic"):
        d["kind"] = "vmem"; d["r"] = set().union(*[regs(x) for x in ops]); d["store"] = True
        d["sdata"] = regs(ops[0]) if op.startswith("buffer") else regs(ops[1])
        d["wide"] = "x4" in op or "x3" in op
    elif op.startswith("s_"):
        d["kind"] = "salu"
        if op in ("s_nop",): d["n"] = int(ops[0]) + 1
        elif op.startswith("s_cmp") or op.startswith("s_cbranch") or op in ("s_branch", "s_barrier", "s_waitcnt", "s_endpgm", "s_setprio", "s_sleep"):
            d["r"] = set().union(*[regs(x) for x in ops]) if ops else set()
        else:
            d["w"] = regs(ops[0]); d["r"] = set().union(*[regs(x) for x in ops[1:]]) if len(ops) > 1 else set()
    return d

def check(lines, window=24):
    ins = []
    for i, l in enumerate(lines):
        d = parse(l)
        if d: d["idx"] = i; ins.append(d)
    msgs = []
    for j, c in enumerate(ins):
        dist = 0
        for i in range(j - 1, max(-1, j - 1 - window), -1):
            p = ins[i]
            if p["op"] in ("s_branch", "s_endpgm"): break
            need = 0; why = ""
            def upd(n, w):
                nonlocal need, why
                if n > need: need, why = n, w
            pw = p["w"]
            vw = {x for x in pw if x[0] in "va"}
            sw = {x for x in pw if x[0] == "s"}
            if p["kind"] == "valu":
                if c["kind"] == "mfma" and vw & c["r"]: upd(2, "valu->mfma")
                if c.get("perm") and vw & c["r"]: upd(2, "valu->permlane")
                if c.get("lane") and vw & c["r"]: upd(1, "valu->readlane")
                if p.get("trans") and c["kind"] in ("valu", "mfma") and not c.get("trans") and vw & c["r"]: upd(1, "trans->valu")
                if p.get("trans") and c["kind"] in ("valu",) and c.get("trans") and vw & c["r"]: upd(0, "")
                if c["kind"] == "vmem" and sw & c["r"]: upd(5, "valu sgpr->vmem")
                if c["kind"] == "valu" and sw & c["r"]: upd(2, "valu sgpr->valu")
                if ("s", "exec") in pw and c["kind"] == "mfma": upd(4, "exec->mfma")
            if p["kind"] == "mfma":
                big = 12 if p["passes"] == 8 else 8
                if c["kind"] == "mfma":
                    if vw & (c["a"] | c["b"]): upd(big, "mfma D->mfma AB")
                    if vw & c["cin"] and not (c["cin"] == vw and c["passes"] == p["passes"]): upd(10 if p["passes"] == 8 else 6, "mfma D->mfma C partial")
                    if vw & c["w"] and not (c["cin"] == vw): upd(big, "mfma D->mfma D waw (conservative)")
                elif c["kind"] in ("valu", "ds", "vmem"):
                    if vw & (c["r"] | c["w"]): upd(big, "mfma D->valu/mem")
                    if c["kind"] == "valu" and p["cin"] & c["w"]: upd(7 if p["passes"] == 8 else 3, "mfma C WAR valu")
            if p["kind"] == "salu" and ("s", "m0") in pw and c.get("ldsdma"): upd(1, "m0->ldsdma")
            if p.get("store") and p.get("wide") and (p["sdata"] & c["w"]): upd(2 if c["kind"] == "valu" else 1, "store data WAR")
            if need > dist:
                msgs.append(f"line {c['idx']}: '{c['line']}' needs {need} states after line {p['idx']} '{p['line']}' ({why}), has {dist}")
            dist += p.get("n", 1)
            if dist >= 20: break
    return msgs

def kernel_desc(name, vgpr=256, sgpr=102):
    acc = (vgpr + 3) // 4 * 4
    return f""".section .rodata,"a"
.p2align 6
.amdhsa_kernel {name}
  .amdhsa_next_free_vgpr {vgpr}
  .amdhsa_next_free_sgpr {sgpr}
  .amdhsa_accum_offset {acc}
  .amdhsa_group_segment_fixed_size 0
  .amdhsa_kernarg_size 104
  .amdhsa_user_sgpr_count 2
  .amdhsa_user_sgpr_kernarg_segment_ptr 1
  .amdhsa_system_sgpr_workgroup_id_x 1
.end_amdhsa_kernel
"""
```

```python
import sys, math
from asmlib import *
KN = "concat_heads__mha_block_cached__gqa_block_cached__near_ridge"

RING = 0;            UNIT = 12288
WQ0 = 6 * UNIT;      WQU = 24576
X0 = WQ0 + 2 * WQU;  XU = 12288
LDS_A = X0 + 2 * XU

SK, SV, SWQ, SX, SWS, SDBG, SWO, SOUT = 32, 36, 40, 44, 48, 52, 56, 60
sAB, sB, sJ, sW = 64, 65, 66, 67
sT0, sT1, sT2, sT3 = 68, 69, 70, 71
sC = 72
sCNT, sRND = 73, 74
sRING, sWQS, sXS = 75, 76, 77
sOOFF = 78
sKV, sWQO, sXO, sPF = 80, 81, 82, 83
sM, sSO = 84, 85
sTT = 86

TTHR = 8.0
OPT = set(a[2:] for a in sys.argv if a.startswith('--'))
def optv(k, d):
    for a in sys.argv:
        if a.startswith('--' + k + '='): return a.split('=')[1]
    return d
WAUX = optv('waux', '')
OAUX = optv('oaux', '')
KVAUX = optv('kvaux', 'nt')
def f32(x):
    import struct
    return "0x%08x" % struct.unpack("<I", struct.pack("<f", x))[0]

def entry(A, name):
    A(f".globl {name}\n.p2align 8\n.type {name},@function\n{name}:")
    A("s_cmp_ge_u32 s2, 256\ns_cbranch_scc1 L_exit_" + name)
    A("s_load_dwordx16 s[4:19], s[0:1], 0\ns_load_dwordx8 s[20:27], s[0:1], 64\ns_load_dwordx2 s[28:29], s[0:1], 96")
    A("v_lshrrev_b32 v1, 6, v0\nv_and_b32 v0, 63, v0")
    A(f"s_and_b32 s3, s2, 7\ns_lshr_b32 {s(sAB)}, s3, 2\ns_and_b32 s3, s3, 3\ns_lshl_b32 s3, s3, 1")
    A(f"v_readfirstlane_b32 {s(sW)}, v1")
    A(f"s_lshr_b32 s30, s2, 3\ns_and_b32 {s(sB)}, s30, 15\ns_lshr_b32 s30, s30, 4\ns_add_u32 {s(sJ)}, s3, s30")
    A("s_waitcnt lgkmcnt(0)")
    A(f"s_cmp_eq_u32 {s(sAB)}, 1")
    for dst, a, b, size in ((SX, 4, 14, 1966080), (SK, 6, 16, 100663296), (SV, 8, 18, 100663296), (SWQ, 10, 20, 7864320), (SWO, 12, 22, 7864320)):
        A(f"s_cselect_b32 {s(dst)}, {s(b)}, {s(a)}\ns_cselect_b32 {s(dst+1)}, {s(b+1)}, {s(a+1)}")
        A(f"s_mov_b32 {s(dst+2)}, {size}\ns_mov_b32 {s(dst+3)}, 0x20000")
    for dst, a, size in ((SOUT, 24, 3932160), (SDBG, 26, 256), (SWS, 28, 438042624)):
        A(f"s_mov_b32 {s(dst)}, {s(a)}\ns_mov_b32 {s(dst+1)}, {s(a+1)}\ns_mov_b32 {s(dst+2)}, {size}\ns_mov_b32 {s(dst+3)}, 0x20000")

vTK, vTV, vTW, vTX, vTP, vDUM = 8, 14, 17, 20, 24, 25
def tab24(A, dst, i, swz, rowstride, sub):
    A(f"v_add_u32 v2, {64*i}, v0")
    A("v_mul_u32_u24 v3, 2731, v2\nv_lshrrev_b32 v3, 16, v3")
    A("v_mul_u32_u24 v4, 24, v3\nv_sub_u32 v2, v2, v4")
    if swz == "K": A("v_bfe_u32 v4, v3, 1, 3")
    else: A("v_bfe_u32 v4, v3, 1, 1\nv_lshlrev_b32 v4, 2, v4")
    if "noswz" in OPT: A("v_mov_b32 v4, 0")
    A("v_xor_b32 v2, v2, v4\nv_lshlrev_b32 v2, 4, v2")
    A(f"v_mul_u32_u24 v3, {rowstride}, v3")
    A(f"v_add_u32 v2, v2, v3\nv_subrev_u32 {v(dst)}, {sub}, v2")

def grp(A, tabs, srd, aux=""):
    for i, t in enumerate(tabs):
        A(f"buffer_load_dwordx4 {v(t)}, {s(srd,4)}, {s(sSO)} offen offset:{1024*i} {aux} lds".replace("  ", " "))

def issue_unit_kv(A, srd, tabs_by_g, ldsbase_s, ldsoff, src_s, srcoff):
    for g in range(4):
        A(f"s_add_u32 m0, {s(ldsbase_s)}, {ldsoff + 3072*g}")
        A(f"s_add_u32 {s(sSO)}, {s(src_s)}, {srcoff + 3072*g}")
        grp(A, tabs_by_g(g), srd, KVAUX)
def issue_K(A, base_s, ldsoff, src_s, srcoff): issue_unit_kv(A, SK, lambda g: [vTK + 3*(g % 2) + i for i in range(3)], base_s, ldsoff, src_s, srcoff)
def issue_V(A, base_s, ldsoff, src_s, srcoff): issue_unit_kv(A, SV, lambda g: [vTV + i for i in range(3)], base_s, ldsoff, src_s, srcoff)
def issue_WQ(A, base_s, ldsoff, src_s, srcoff):
    for g in range(8):
        A(f"s_add_u32 m0, {s(base_s)}, {ldsoff + 3072*g}")
        A(f"s_add_u32 {s(sSO)}, {s(src_s)}, {srcoff + 98304*g}")
        grp(A, [vTW + i for i in range(3)], SWQ, WAUX)
        if g == 4: A("s_waitcnt vmcnt(40)")
def issue_X(A, base_s, ldsoff, src_s, srcoff):
    for g in range(3):
        A(f"s_add_u32 m0, {s(base_s)}, {ldsoff + 4096*g}")
        A(f"s_add_u32 {s(sSO)}, {s(src_s)}, {srcoff + 32*1280*g}")
        grp(A, [vTX + i for i in range(4)], SX, WAUX)
def issue_PF(A, src_s, srcoff):
    A(f"s_add_u32 {s(sSO)}, {s(src_s)}, {srcoff}")
    A(f"buffer_load_dword {v(vDUM)}, {v(vTP)}, {s(SWQ,4)}, {s(sSO)} offen {WAUX}")

def loader(A):
    A.label("L_loader")
    A("s_setprio 3")
    sZ = sT3
    A(f"s_mov_b32 {s(sZ)}, 0")
    A("v_mul_u32_u24 v2, 171, v0\nv_lshrrev_b32 v2, 9, v2")
    A("v_mul_u32_u24 v3, 3, v2\nv_sub_u32 v3, v0, v3\nv_lshlrev_b32 v3, 7, v3")
    A("v_mul_u32_u24 v2, 12288, v2\nv_add_u32 v2, v2, v3")
    A(f"v_mov_b32 v3, 0x7f000000\nv_cmp_gt_u32 vcc, 30, v0\ns_nop 1\nv_cndmask_b32 {v(vTP)}, v3, v2, vcc")
    A(f"s_mul_i32 {s(sWQO)}, {s(sJ)}, 384")
    A(f"s_mul_i32 {s(sPF)}, {s(sB)}, {40*12288}\ns_add_u32 {s(sPF)}, {s(sPF)}, {s(sWQO)}")
    for i in range(4): issue_PF(A, sPF, 10*12288*i)
    A(f"s_add_u32 {s(sPF)}, {s(sPF)}, {8*384}")
    for i in range(4):
        A(f"v_lshrrev_b32 v2, 3, v0\nv_add_u32 v2, {8*i}, v2")
        A("v_and_b32 v3, 7, v0\nv_bfe_u32 v4, v2, 1, 3\nv_xor_b32 v3, v3, v4\nv_lshlrev_b32 v3, 4, v3")
        A(f"v_mul_u32_u24 v2, 1280, v2\nv_add_u32 v2, v2, v3\nv_subrev_u32 {v(vTX+i)}, {1024*i}, v2")
    A(f"s_mul_i32 {s(sXO)}, {s(sB)}, 122880")
    issue_X(A, sZ, RING + 0*UNIT, sXO, 0)
    issue_X(A, sZ, RING + 1*UNIT, sXO, 128)
    for i in range(3): tab24(A, vTW + i, i, "V", 12288, 1024*i)
    issue_WQ(A, sZ, WQ0, sWQO, 0)
    issue_X(A, sZ, RING + 2*UNIT, sXO, 256)
    issue_X(A, sZ, RING + 3*UNIT, sXO, 384)
    for i in range(6): tab24(A, vTK + i, i, "K", 384, 1024*i)
    for i in range(3): tab24(A, vTV + i, i, "V", 384, 1024*i)
    A(f"s_lshl_b32 {s(sKV)}, {s(sB)}, 5\ns_add_u32 {s(sKV)}, {s(sKV)}, {s(sJ)}\ns_mul_i32 {s(sKV)}, {s(sKV)}, 196608")
    A("s_waitcnt vmcnt(24)\ns_barrier")
    for t in range(10):
        n_after = 0
        if t < 9: issue_WQ(A, sZ, WQ0 + ((t+1) % 2)*WQU, sWQO, (t+1)*64*12288)
        if t % 2 == 0:
            if t <= 6:
                issue_PF(A, sPF, 10*12288*(t//2)); n_after += 1
            for u in (t+4, t+5):
                if u < 10: issue_X(A, sZ, RING + (u % 6)*UNIT, sXO, u*128)
                elif u % 2 == 0: issue_K(A, sZ, RING + (u % 6)*UNIT, sKV, ((u-10)//2)*UNIT)
                else: issue_V(A, sZ, RING + (u % 6)*UNIT, sKV, ((u-10)//2)*UNIT)
            n_after += 24
        if t == 9: n_after = 24
        A(f"s_waitcnt vmcnt({n_after})\ns_barrier")
    A(f"s_add_u32 {s(sKV)}, {s(sKV)}, {2*UNIT}")
    A(f"s_mov_b32 {s(sRING)}, {RING + 2*UNIT}")
    A(f"s_add_u32 {s(sWQO)}, {s(sWQO)}, {8*384}")
    A(f"s_add_u32 {s(sPF)}, {s(sPF)}, {8*384}")
    A(f"s_mov_b32 {s(sWQS)}, {WQ0}\ns_mov_b32 {s(sXS)}, {X0}")
    A(f"s_mov_b32 {s(sRND)}, 0\ns_mov_b32 {s(sM)}, 0")
    A.label("L_ld_round")
    A(f"s_mov_b32 {s(sT0)}, {s(sWQO)}\ns_mov_b32 {s(sT1)}, {s(sXO)}\ns_mov_b32 {s(sT2)}, {s(sPF)}")
    A(f"s_mov_b32 {s(sCNT)}, 0\ns_mov_b32 {s(sTT)}, 0")
    A.label("L_ld_tick")
    A(f"s_cmp_ge_u32 {s(sRND)}, {0 if 'nol2' in OPT else 3}\ns_cbranch_scc1 L_ld_nol2")
    A(f"s_cmp_eq_u32 {s(sCNT)}, 15\ns_cbranch_scc1 L_ld_nol2")
    A(f"s_cmp_eq_u32 {s(sTT)}, 2\ns_cbranch_scc1 L_ld_pf")
    issue_WQ(A, sWQS, 0, sT0, 0)
    issue_X(A, sXS, 0, sT1, 0)
    A(f"s_add_u32 {s(sT0)}, {s(sT0)}, {64*12288}\ns_add_u32 {s(sT1)}, {s(sT1)}, 128")
    A(f"s_xor_b32 {s(sWQS)}, {s(sWQS)}, {WQ0 ^ (WQ0+WQU)}\ns_xor_b32 {s(sXS)}, {s(sXS)}, {X0 ^ (X0+XU)}")
    A("s_branch L_ld_nol2")
    A.label("L_ld_pf")
    A(f"s_cmp_ge_u32 {s(sRND)}, 2\ns_cbranch_scc1 L_ld_nol2")
    A(f"s_cmp_eq_u32 {s(sCNT)}, 14\ns_cbranch_scc1 L_ld_nol2")
    A(f"s_mov_b32 {s(sM)}, 1")
    A.label("L_ld_nol2")
    A(f"s_cmp_lt_u32 {s(sCNT)}, 14\ns_cbranch_scc1 L_ld_kv")
    A(f"s_cmp_eq_u32 {s(sRND)}, 3\ns_cbranch_scc1 L_ld_nokv")
    A(f"s_cmp_lg_u32 {s(sCNT)}, 14\ns_cbranch_scc1 L_ld_kv")
    A(f"s_add_u32 {s(sKV)}, {s(sKV)}, {7*196608}")
    A.label("L_ld_kv")
    issue_K(A, sRING, 0, sKV, 0)
    issue_V(A, sRING, UNIT, sKV, 0)
    A(f"s_add_u32 {s(sKV)}, {s(sKV)}, {UNIT}")
    A(f"s_add_u32 {s(sRING)}, {s(sRING)}, {2*UNIT}\ns_cmp_eq_u32 {s(sRING)}, {RING + 6*UNIT}\ns_cselect_b32 {s(sRING)}, {RING}, {s(sRING)}")
    A(f"s_cmp_eq_u32 {s(sM)}, 1\ns_cbranch_scc1 L_ld_pf2")
    A("s_waitcnt vmcnt(24)\ns_branch L_ld_bar")
    A.label("L_ld_pf2")
    issue_PF(A, sT2, 0)
    A(f"s_add_u32 {s(sT2)}, {s(sT2)}, {10*12288}\ns_mov_b32 {s(sM)}, 0")
    A("s_waitcnt vmcnt(25)\ns_branch L_ld_bar")
    A.label("L_ld_nokv")
    A("s_waitcnt vmcnt(0)")
    A.label("L_ld_bar")
    A("s_barrier")
    A(f"s_add_u32 {s(sTT)}, {s(sTT)}, 1\ns_cmp_eq_u32 {s(sTT)}, 3\ns_cselect_b32 {s(sTT)}, 0, {s(sTT)}")
    A(f"s_add_u32 {s(sCNT)}, {s(sCNT)}, 1\ns_cmp_lt_u32 {s(sCNT)}, 16\ns_cbranch_scc1 L_ld_tick")
    A(f"s_add_u32 {s(sWQO)}, {s(sWQO)}, {8*384}\ns_add_u32 {s(sPF)}, {s(sPF)}, {8*384}")
    A(f"s_add_u32 {s(sRND)}, {s(sRND)}, 1\ns_cmp_lt_u32 {s(sRND)}, 4\ns_cbranch_scc1 L_ld_round")
    A("s_endpgm")

ACC, QF, FF, SS, PP = 160, 112, 64, 48, 40
aK, aV, aW, aX = 28, 32, 34, 36
tK, tV = 16, 20
vM, vTH, vL0, vL1, vA, vB_, vSO = 2, 3, 4, 5, 6, 7, 8

def xy_setup(A):
    A(f"s_and_b32 {s(sT0)}, {s(sW)}, 3")
    A("v_and_b32 v10, 31, v0\nv_lshrrev_b32 v11, 5, v0\nv_bfe_u32 v12, v10, 1, 3")
    A("v_mul_u32_u24 v13, 384, v10\nv_lshlrev_b32 v14, 7, v10")
    A(f"s_lshl_b32 {s(sT1)}, {s(sT0)}, 12\nv_add_u32 v14, {s(sT1)}, v14")
    for q in range(4):
        A(f"v_add_u32 v15, {2*q}, v11\nv_xor_b32 v15, v15, v12\nv_lshlrev_b32 v15, 4, v15")
        A(f"v_add_u32 {v(aK+q)}, v13, v15\nv_add_u32 {v(aX+q)}, v14, v15")
    A("v_bfe_u32 v10, v0, 2, 2\nv_and_b32 v12, 3, v0\nv_bfe_u32 v13, v0, 4, 1")
    A("v_bfe_u32 v14, v0, 3, 1\nv_lshlrev_b32 v14, 6, v14")
    A("v_lshl_add_u32 v15, v11, 2, v10\nv_mul_u32_u24 v15, 384, v15\nv_lshl_add_u32 v15, v13, 5, v15\nv_lshl_add_u32 v15, v12, 3, v15")
    A(f"v_add_u32 {v(aV)}, v15, v14\nv_sub_u32 {v(aV+1)}, v15, v14")
    A("v_and_b32 v9, 1, v12\nv_lshrrev_b32 v12, 1, v12\nv_lshl_add_u32 v12, v9, 1, v12")
    A("v_lshl_add_u32 v15, v11, 3, v10\nv_mul_u32_u24 v15, 384, v15\nv_lshl_add_u32 v15, v13, 5, v15\nv_lshl_add_u32 v15, v12, 3, v15")
    A(f"v_add_u32 {v(aW)}, v15, v14\nv_sub_u32 {v(aW+1)}, v15, v14")
    A(f"v_lshlrev_b32 {v(vSO)}, 4, v0")
    A(f"s_mov_b32 {s(sC)}, {f32(math.log2(math.e) / math.sqrt(192.0))}")
    A(f"s_lshl_b32 {s(sOOFF)}, {s(sAB)}, 4\ns_add_u32 {s(sOOFF)}, {s(sOOFF)}, {s(sB)}\ns_lshl_b32 {s(sOOFF)}, {s(sOOFF)}, 5\ns_add_u32 {s(sOOFF)}, {s(sOOFF)}, {s(sJ)}")
    A(f"s_lshr_b32 {s(sT1)}, {s(sW)}, 2\ns_lshl_b32 {s(sT1)}, {s(sT1)}, 3\ns_add_u32 {s(sOOFF)}, {s(sOOFF)}, {s(sT1)}")
    A(f"s_mul_i32 {s(sOOFF)}, {s(sOOFF)}, 3\ns_add_u32 {s(sOOFF)}, {s(sOOFF)}, {s(sT0)}\ns_mul_i32 {s(sOOFF)}, {s(sOOFF)}, 12288")

def zero_acc(A):
    for i in range(96): A(f"v_mov_b32 {v(ACC+i)}, 0")

def q_tick(A):
    if "noq" in OPT: return
    for q in range(4): A(f"v_add_u32 {v(tK+q)}, {s(sXS)}, {v(aX+q)}")
    for p in range(2): A(f"v_add_u32 {v(tV+p)}, {s(sWQS)}, {v(aW+p)}")
    seq = [(ks, dt) for ks in range(4) for dt in range(6)]
    def rd(n):
        ks, dt = seq[n]
        r = FF + 4*(n % 12)
        for u in range(2):
            A(f"ds_read_b64_tr_b16 {v(r+2*u,2)}, {v(tV + dt % 2)} offset:{(16*ks+4*u)*384 + 64*dt}")
    A(f"ds_read_b128 {v(SS,4)}, {v(tK)}")
    rd(0)
    for ks in range(1, 4): A(f"ds_read_b128 {v(SS+4*ks,4)}, {v(tK+ks)}")
    D = 5
    for n in range(1, D): rd(n)
    for n in range(24):
        ks, dt = seq[n]
        issued_after = 2 * (min(n + D, 24) - 1 - n) + (3 if n == 0 else 0)
        A(f"s_waitcnt lgkmcnt({issued_after})")
        A(f"v_mfma_f32_32x32x16_bf16 {v(ACC+16*dt,16)}, {v(FF+4*(n%12),4)}, {v(SS+4*ks,4)}, {v(ACC+16*dt,16)}")
        if n + D < 24: rd(n + D)

def finalize_q(A):
    A.nop(12)
    for i in range(48): A(f"v_cvt_pk_bf16_f32 {v(QF+i)}, {v(ACC+2*i)}, {v(ACC+2*i+1)}")

def attn_tick(A, first, tag):
    if "noattn" in OPT:
        if not first: A.label(f"L_back_{tag}")
        return
    for q in range(4): A(f"v_add_u32 {v(tK+q)}, {s(sRING)}, {v(aK+q)}")
    for p in range(2): A(f"v_add_u32 {v(tV+p)}, {s(sRING)}, {v(aV+p)}")
    for kk in range(12): A(f"ds_read_b128 {v(FF+4*kk,4)}, {v(tK + kk % 4)} offset:{128*(kk//4)}")
    for kk in range(12):
        A(f"s_waitcnt lgkmcnt({min(15, 11 - kk + 2*kk)})")
        A(f"v_mfma_f32_32x32x16_bf16 {v(SS,16)}, {v(FF+4*kk,4)}, {v(QF+4*kk,4)}, {'0' if kk == 0 else v(SS,16)}")
        dt, ks = kk // 2, kk % 2
        for u in range(2):
            A(f"ds_read_b64_tr_b16 {v(FF+4*kk+2*u,2)}, {v(tV + dt % 2)} offset:{UNIT + (16*ks+8*u)*384 + 64*dt}")
    A(f"s_add_u32 {s(sRING)}, {s(sRING)}, {2*UNIT}\ns_cmp_eq_u32 {s(sRING)}, {RING + 6*UNIT}\ns_cselect_b32 {s(sRING)}, {RING}, {s(sRING)}")
    A.nop(12 - 5)
    S = lambda i: v(SS + i)
    A(f"v_max3_f32 {v(vA)}, {S(0)}, {S(1)}, {S(2)}\nv_max3_f32 {v(vB_)}, {S(3)}, {S(4)}, {S(5)}")
    A(f"v_max3_f32 {v(vA)}, {v(vA)}, {S(6)}, {S(7)}\nv_max3_f32 {v(vB_)}, {v(vB_)}, {S(8)}, {S(9)}")
    A(f"v_max3_f32 {v(vA)}, {v(vA)}, {S(10)}, {S(11)}\nv_max3_f32 {v(vB_)}, {v(vB_)}, {S(12)}, {S(13)}")
    A(f"v_max3_f32 {v(vA)}, {v(vA)}, {S(14)}, {S(15)}\nv_max_f32 {v(vA)}, {v(vA)}, {v(vB_)}")
    A(f"v_mov_b32 {v(vB_)}, {v(vA)}\ns_nop 1\nv_permlane32_swap_b32 {v(vA)}, {v(vB_)}")
    A(f"v_max_f32 {v(vA)}, {v(vA)}, {v(vB_)}\nv_mul_f32 {v(vA)}, {s(sC)}, {v(vA)}")
    if first:
        A(f"v_mov_b32 {v(vM)}, {v(vA)}\nv_add_f32 {v(vTH)}, {f32(TTHR)}, {v(vA)}")
    else:
        A(f"v_cmp_gt_f32 vcc, {v(vA)}, {v(vTH)}\ns_cbranch_vccnz L_rare_{tag}")
        A.label(f"L_back_{tag}")
    for i in range(16): A(f"v_fma_f32 {S(i)}, {S(i)}, {s(sC)}, -{v(vM)}")
    for i in range(16): A(f"v_exp_f32 {S(i)}, {S(i)}")
    for i in range(8): A(f"v_cvt_pk_bf16_f32 {v(PP+i)}, {S(2*i)}, {S(2*i+1)}")
    A("s_waitcnt lgkmcnt(0)")
    n = 0
    for dt in range(6):
        for ks in range(2):
            kk = 2*dt + ks
            c = "0" if (first and ks == 0) else v(ACC+16*dt, 16)
            A(f"v_mfma_f32_32x32x16_bf16 {v(ACC+16*dt,16)}, {v(FF+4*kk,4)}, {v(PP+4*ks,4)}, {c}")
            for _ in range(2):
                if n < 16:
                    L = vL0 + (n % 2)
                    if first and n < 2: A(f"v_mov_b32 {v(L)}, {S(n)}")
                    else: A(f"v_add_f32 {v(L)}, {v(L)}, {S(n)}")
                    n += 1

def rare(A, tag):
    A.label(f"L_rare_{tag}")
    A(f"v_max_f32 {v(vA)}, {v(vA)}, {v(vM)}\nv_sub_f32 {v(vB_)}, {v(vM)}, {v(vA)}\nv_exp_f32 {v(vB_)}, {v(vB_)}")
    A(f"v_mov_b32 {v(vM)}, {v(vA)}\nv_add_f32 {v(vTH)}, {f32(TTHR)}, {v(vA)}")
    A(f"v_mul_f32 {v(vL0)}, {v(vL0)}, {v(vB_)}\nv_mul_f32 {v(vL1)}, {v(vL1)}, {v(vB_)}")
    for i in range(96): A(f"v_mul_f32 {v(ACC+i)}, {v(ACC+i)}, {v(vB_)}")
    A(f"s_branch L_back_{tag}")

def finalize_o(A):
    A(f"v_add_f32 {v(vA)}, {v(vL0)}, {v(vL1)}\nv_mov_b32 {v(vB_)}, {v(vA)}\ns_nop 1\nv_permlane32_swap_b32 {v(vA)}, {v(vB_)}")
    A(f"v_add_f32 {v(vA)}, {v(vA)}, {v(vB_)}\nv_rcp_f32 {v(vA)}, {v(vA)}")
    A.nop(12)
    for f in range(12):
        for i in range(8): A(f"v_mul_f32 {v(ACC+8*f+i)}, {v(ACC+8*f+i)}, {v(vA)}")
        for i in range(4): A(f"v_cvt_pk_bf16_f32 {v(FF+4*f+i)}, {v(ACC+8*f+2*i)}, {v(ACC+8*f+2*i+1)}")
        if f % 4 == 0: A(f"s_add_u32 {s(sT1)}, {s(sOOFF)}, {1024*f}")
        if "nostore" not in OPT: A(f"buffer_store_dwordx4 {v(FF+4*f,4)}, {v(vSO)}, {s(SWS,4)}, {s(sT1)} offen offset:{1024*(f%4)} {OAUX}")
    A(f"s_add_u32 {s(sOOFF)}, {s(sOOFF)}, {16*3*12288}")

def xy(A):
    A.label("L_xy")
    xy_setup(A)
    zero_acc(A)
    A(f"s_mov_b32 {s(sWQS)}, {WQ0}")
    A(f"s_cmp_ge_u32 {s(sW)}, 4\ns_cbranch_scc1 L_y_start")
    A(f"s_mov_b32 {s(sXS)}, {RING}\ns_mov_b32 {s(sCNT)}, 0\ns_mov_b32 {s(sRND)}, 0\ns_mov_b32 {s(sRING)}, {RING + 4*UNIT}")
    A("s_barrier")
    A.label("L_x_pro")
    q_tick(A)
    A(f"s_xor_b32 {s(sWQS)}, {s(sWQS)}, {WQ0 ^ (WQ0+WQU)}")
    A(f"s_add_u32 {s(sXS)}, {s(sXS)}, {UNIT}\ns_cmp_eq_u32 {s(sXS)}, {RING + 6*UNIT}\ns_cselect_b32 {s(sXS)}, {RING}, {s(sXS)}")
    A(f"s_add_u32 {s(sCNT)}, {s(sCNT)}, 1\ns_cmp_eq_u32 {s(sCNT)}, 10\ns_cbranch_scc1 L_q_done")
    A("s_barrier\ns_branch L_x_pro")
    A.label("L_y_start")
    for _ in range(11): A("s_barrier")
    A(f"s_mov_b32 {s(sRND)}, 1\ns_mov_b32 {s(sRING)}, {RING + 0*UNIT}")
    A.label("L_qround")
    A(f"s_setprio 0\ns_mov_b32 {s(sXS)}, {X0}\ns_mov_b32 {s(sCNT)}, 0")
    A.label("L_q_loop")
    A("s_barrier")
    q_tick(A)
    A(f"s_xor_b32 {s(sWQS)}, {s(sWQS)}, {WQ0 ^ (WQ0+WQU)}\ns_xor_b32 {s(sXS)}, {s(sXS)}, {X0 ^ (X0+XU)}")
    A(f"s_add_u32 {s(sCNT)}, {s(sCNT)}, 1\ns_bitcmp1_b32 {s(sCNT)}, 0\ns_cbranch_scc1 L_q_loop")
    A("s_barrier")
    A(f"s_cmp_lt_u32 {s(sCNT)}, 10\ns_cbranch_scc1 L_q_loop")
    A.label("L_q_done")
    finalize_q(A)
    A("s_setprio 1\ns_barrier")
    attn_tick(A, True, "a")
    A(f"s_mov_b32 {s(sCNT)}, 1\ns_barrier")
    A.label("L_attn_loop")
    attn_tick(A, False, "b")
    A(f"s_add_u32 {s(sCNT)}, {s(sCNT)}, 1\ns_barrier\ns_cmp_lt_u32 {s(sCNT)}, 16\ns_cbranch_scc1 L_attn_loop")
    finalize_o(A)
    A(f"s_cmp_ge_u32 {s(sRND)}, 2\ns_cbranch_scc1 L_xy_end")
    A(f"s_add_u32 {s(sRND)}, {s(sRND)}, 2")
    A(f"s_add_u32 {s(sRING)}, {s(sRING)}, {2*UNIT}\ns_cmp_eq_u32 {s(sRING)}, {RING + 6*UNIT}\ns_cselect_b32 {s(sRING)}, {RING}, {s(sRING)}")
    zero_acc(A)
    A("s_branch L_qround")
    A.label("L_xy_end")
    A(f"s_cmp_eq_u32 {s(sRND)}, 3\ns_cbranch_scc1 L_xy_end2\ns_mov_b32 {s(sCNT)}, 0")
    A.label("L_x_idle")
    A(f"s_barrier\ns_add_u32 {s(sCNT)}, {s(sCNT)}, 1\ns_cmp_lt_u32 {s(sCNT)}, 16\ns_cbranch_scc1 L_x_idle")
    A.label("L_xy_end2")
    A("s_waitcnt vmcnt(0)\ns_endpgm")
    rare(A, "b")

def kernel_a(A, name):
    entry(A, name)
    A(f"s_cmp_eq_u32 {s(sW)}, 3\ns_cbranch_scc1 L_loader")
    A(f"s_cmp_lg_u32 {s(sW)}, 7\ns_cbranch_scc1 L_xy")
    A.label("L_exit_" + name)
    A("s_endpgm")
    loader(A)
    xy(A)


BSLOT = 33792; BNS = 4; LDS_B = BSLOT * BNS
def kernel_b(A, name):
    entry(A, name)
    A(f"s_and_b32 s3, s2, 3\ns_lshl_b32 s3, s3, 2\ns_lshr_b32 s30, s2, 3\ns_and_b32 s31, s30, 3\ns_add_u32 {s(sB)}, s3, s31\ns_lshr_b32 {s(sJ)}, s30, 2")
    A(f"s_cmp_eq_u32 {s(sW)}, 7\ns_cbranch_scc1 LB_loader")
    A(f"s_cmp_lt_u32 {s(sW)}, 6\ns_cbranch_scc1 LB_comp")
    A.label("L_exit_" + name)
    A("s_endpgm")
    A.label("LB_loader")
    A("s_setprio 3")
    vO, vW = 8, 9
    A(f"v_lshlrev_b32 {v(vO)}, 4, v0")
    for i in range(5):
        A(f"v_add_u32 v2, {64*i}, v0\nv_mul_u32_u24 v3, 6554, v2\nv_lshrrev_b32 v3, 16, v3\nv_mul_u32_u24 v4, 10, v3\nv_sub_u32 v2, v2, v4\nv_lshlrev_b32 v2, 4, v2")
        A(f"v_mul_u32_u24 v3, 1280, v3\nv_add_u32 v2, v2, v3\nv_subrev_u32 {v(vW+i)}, {1024*(i%4)}, v2")
    A(f"s_lshl_b32 {s(sKV)}, {s(sAB)}, 4\ns_add_u32 {s(sKV)}, {s(sKV)}, {s(sB)}\ns_mul_i32 {s(sKV)}, {s(sKV)}, {32*3*12288}")
    A(f"s_mul_i32 {s(sWQO)}, {s(sJ)}, 160")
    A(f"s_mov_b32 {s(sRING)}, 0\ns_mov_b32 {s(sCNT)}, 0\ns_mov_b32 {s(sT0)}, 6144")
    def issue():
        for qt in range(3):
            for g, n in ((0, 4), (1, 2)):
                A(f"s_add_u32 m0, {s(sRING)}, {qt*6144 + 4096*g}\ns_add_u32 {s(sSO)}, {s(sKV)}, {qt*12288 + 4096*g}")
                for i in range(n): A(f"buffer_load_dwordx4 {v(vO)}, {s(SWS,4)}, {s(sSO)} offen offset:{1024*i} lds")
        for g in range(3):
            A(f"s_add_u32 m0, {s(sRING)}, {18432 + 5120*g}\ns_add_u32 {s(sSO)}, {s(sWQO)}, {32*1280*g}")
            for i in range(4): A(f"buffer_load_dwordx4 {v(vW+i)}, {s(SWO,4)}, {s(sSO)} offen offset:{1024*i} lds")
            A(f"s_add_u32 m0, {s(sRING)}, {18432 + 5120*g + 4096}\ns_nop 0")
            A(f"buffer_load_dwordx4 {v(vW+4)}, {s(SWO,4)}, {s(sSO)} offen lds")
        A(f"s_add_u32 {s(sCNT)}, {s(sCNT)}, 1\ns_add_u32 {s(sKV)}, {s(sKV)}, {s(sT0)}\ns_xor_b32 {s(sT0)}, {s(sT0)}, {6144 ^ (3*12288 - 6144)}")
        A(f"s_add_u32 {s(sWQO)}, {s(sWQO)}, {96*1280}")
        A(f"s_add_u32 {s(sRING)}, {s(sRING)}, {BSLOT}\ns_cmp_eq_u32 {s(sRING)}, {BSLOT*BNS}\ns_cselect_b32 {s(sRING)}, 0, {s(sRING)}")
    issue(); A("s_waitcnt vmcnt(28)"); issue(); A("s_waitcnt vmcnt(33)\ns_barrier")
    A.label("LB_ld_loop")
    A("s_waitcnt vmcnt(28)")
    issue()
    A(f"s_waitcnt vmcnt(33)\ns_barrier\ns_cmp_lt_u32 {s(sCNT)}, 64\ns_cbranch_scc1 LB_ld_loop")
    A("s_waitcnt vmcnt(0)\ns_barrier\ns_endpgm")
    A.label("LB_comp")
    BA, BF, BB = 32, 64, 52
    aO, aWo = 8, 9
    A(f"s_lshr_b32 {s(sT0)}, {s(sW)}, 1\ns_mul_i32 {s(sT0)}, {s(sT0)}, 6144\ns_and_b32 {s(sT1)}, {s(sW)}, 1\ns_lshl_b32 {s(sT1)}, {s(sT1)}, 8\ns_add_u32 {s(sT0)}, {s(sT0)}, {s(sT1)}")
    A("v_and_b32 v2, 15, v0\nv_lshlrev_b32 v2, 4, v2\nv_bfe_u32 v3, v0, 4, 1\nv_lshl_add_u32 v2, v3, 9, v2\nv_lshrrev_b32 v4, 5, v0\nv_lshl_add_u32 v2, v4, 10, v2")
    A(f"v_add_u32 {v(aO)}, {s(sT0)}, v2")
    A("v_lshlrev_b32 v4, 4, v4\nv_lshl_add_u32 v4, v3, 2, v4\nv_bfe_u32 v3, v0, 2, 2\nv_add_u32 v4, v4, v3\nv_mul_u32_u24 v4, 160, v4\nv_and_b32 v3, 3, v0\nv_lshl_add_u32 v4, v3, 3, v4")
    A(f"v_add_u32 {v(aWo)}, 18432, v4")
    for i in range(20): A(f"v_mov_b32 {v(BA+i)}, 0")
    A(f"s_mov_b32 {s(sRING)}, 0\ns_mov_b32 {s(sCNT)}, 0\ns_barrier")
    A.label("LB_c_loop")
    A(f"v_add_u32 v10, {s(sRING)}, {v(aO)}\nv_add_u32 v11, {s(sRING)}, {v(aWo)}")
    seq = [(dt, nt) for dt in range(3) for nt in range(5)]
    def rd(n):
        dt, nt = seq[n]
        for u in range(2): A(f"ds_read_b64_tr_b16 {v(BF+4*n+2*u,2)}, v11 offset:{(32*dt+8*u)*160 + 32*nt}")
    for dt in range(3): A(f"ds_read_b128 {v(BB+4*dt,4)}, v10 offset:{2048*dt}")
    D = 6
    for n in range(D): rd(n)
    for n in range(15):
        dt, nt = seq[n]
        A(f"s_waitcnt lgkmcnt({2*(min(n+D,15)-1-n)})")
        A(f"v_mfma_f32_16x16x32_bf16 {v(BA+4*nt,4)}, {v(BF+4*n,4)}, {v(BB+4*dt,4)}, {v(BA+4*nt,4)}")
        if n + D < 15: rd(n + D)
    A(f"s_add_u32 {s(sRING)}, {s(sRING)}, {BSLOT}\ns_cmp_eq_u32 {s(sRING)}, {BSLOT*BNS}\ns_cselect_b32 {s(sRING)}, 0, {s(sRING)}")
    A(f"s_add_u32 {s(sCNT)}, {s(sCNT)}, 1\ns_cmp_eq_u32 {s(sCNT)}, 64\ns_cbranch_scc1 LB_c_done\ns_barrier\ns_branch LB_c_loop")
    A.label("LB_c_done")
    A(f"s_mul_i32 {s(sT0)}, {s(sB)}, 96\ns_lshl_b32 {s(sT1)}, {s(sW)}, 4\ns_add_u32 {s(sT0)}, {s(sT0)}, {s(sT1)}\ns_mul_i32 {s(sT0)}, {s(sT0)}, 2560")
    A(f"s_mul_i32 {s(sT1)}, {s(sAB)}, 1280\ns_add_u32 {s(sT0)}, {s(sT0)}, {s(sT1)}\ns_mul_i32 {s(sT1)}, {s(sJ)}, 160\ns_add_u32 {s(sT0)}, {s(sT0)}, {s(sT1)}")
    A("v_and_b32 v2, 15, v0\nv_mul_u32_u24 v2, 2560, v2\nv_lshrrev_b32 v3, 4, v0\nv_lshl_add_u32 v2, v3, 3, v2")
    A.nop(8)
    for nt in range(5):
        A(f"v_cvt_pk_bf16_f32 {v(BF+2*nt)}, {v(BA+4*nt)}, {v(BA+4*nt+1)}\nv_cvt_pk_bf16_f32 {v(BF+2*nt+1)}, {v(BA+4*nt+2)}, {v(BA+4*nt+3)}")
        A(f"buffer_store_dwordx2 {v(BF+2*nt,2)}, v2, {s(SOUT,4)}, {s(sT0)} offen offset:{32*nt}")
    A("s_endpgm")

STAMP_BASE = 64 << 20
def instrument(lines):
    out = []
    role = None
    for l in lines:
        if l == "L_loader:": role = "L"
        if l == "L_xy:": role = "XY"
        base = 30 if role == "L" else 22
        if l == "s_barrier" and role:
            out += ["s_memtime s[90:91]", "s_waitcnt lgkmcnt(0)", "s_and_b32 m0, s92, 63", "s_cmp_ge_u32 s92, 64", f"s_cbranch_scc1 1f",
                    f"v_writelane_b32 v{base}, s90, m0", "s_branch 2f", "1:", f"v_writelane_b32 v{base+1}, s90, m0", "2:",
                    "s_barrier", "s_memtime s[90:91]", "s_waitcnt lgkmcnt(0)", "s_cmp_ge_u32 s92, 64", f"s_cbranch_scc1 1f",
                    f"v_writelane_b32 v{base+2}, s90, m0", "s_branch 2f", "1:", f"v_writelane_b32 v{base+3}, s90, m0", "2:", "s_add_u32 s92, s92, 1"]
        elif l == "s_endpgm" and role:
            out += ["s_memtime s[90:91]", "s_memrealtime s[94:95]", "s_waitcnt lgkmcnt(0)",
                    f"v_writelane_b32 v{base+1}, s90, 60", f"v_writelane_b32 v{base+1}, s94, 61", f"v_writelane_b32 v{base+1}, s96, 62", f"v_writelane_b32 v{base+1}, s97, 63",
                    f"s_lshl_b32 s90, s2, 3", f"s_add_u32 s90, s90, s{sW}", "s_lshl_b32 s90, s90, 10", f"s_add_u32 s90, s90, {STAMP_BASE}",
                    "v_mbcnt_lo_u32_b32 v1, -1, 0", "v_mbcnt_hi_u32_b32 v1, -1, v1", "v_lshlrev_b32 v1, 2, v1"]
            for i in range(4): out.append(f"buffer_store_dword v{base+i}, v1, s[{SWS}:{SWS+3}], s90 offen offset:{256*i}")
            out += ["s_waitcnt vmcnt(0)", "s_endpgm"]
        else:
            out.append(l)
        if l in ("L_loader:", "L_xy:"):
            out += ["s_memtime s[96:97]", "s_memrealtime s[98:99]", "s_waitcnt lgkmcnt(0)", "s_mov_b32 s97, s98", "s_mov_b32 s92, 0"]
    return out

def main(out, instr=False):
    A = Asm()
    name = "attn_kernel"
    A(f"; @launch kernel={name} grid=(256,1,1) block=(512,1,1) lds={LDS_A}")
    withb = "nob" not in OPT
    if withb: A(f"; @launch kernel=oproj_kernel grid=(256,1,1) block=(512,1,1) lds={LDS_B}")
    A('.amdgcn_target "amdgcn-amd-amdhsa--gfx950"\n.text')
    kernel_a(A, name)
    if instr: A.lines = instrument(A.lines)
    if withb: kernel_b(A, "oproj_kernel")
    msgs = check(A.lines)
    for m in msgs: print("HAZARD", m)
    txt = A.text() + kernel_desc(name) + (kernel_desc("oproj_kernel", 128) if withb else "")
    open(out, "w").write(txt)
    print("wrote", out, len(A.lines), "lines")
if __name__ == "__main__":
    assert all((p*2731) >> 16 == p // 24 for p in range(2048))
    assert all((p*6554) >> 16 == p // 10 for p in range(320))
    assert all((p*171) >> 9 == p // 3 for p in range(64))
    main(sys.argv[1] if len(sys.argv) > 1 else "a.s", "--instr" in sys.argv)
```
